```python
import torch

def _softmax(x, axis=-1):
    return torch.softmax(x, dim=axis)

def _gelu(x):
    return torch.nn.functional.gelu(x, approximate='tanh')

def _silu(x):
    return torch.nn.functional.silu(x)

def _sigmoid(x):
    return torch.sigmoid(x)

def _layernorm(x, axis=-1, eps=1e-05):
    m = x.mean(dim=axis, keepdim=True)
    v = x.var(dim=axis, keepdim=True, unbiased=False)
    return (x - m) / torch.sqrt(v + eps)

def _scatter_add(tgt, idx, src, axis=0):
    return tgt.clone().index_add_(axis, idx, src)

def _segment_sum(src, seg, n):
    out = torch.zeros((n,) + src.shape[1:], dtype=src.dtype)
    return out.index_add_(0, seg, src)

def _pad(x, pw):
    flat = tuple((v for pair in reversed(pw) for v in pair))
    return torch.nn.functional.pad(x, flat)
kernel_name = 'adaLN_cond__ssm_conv_s4__glu_gated_bilinear__prompt'

def setup_inputs():

    _w = lambda a: (lambda t: t.to(torch.bfloat16) if t.is_floating_point() else t)(torch.as_tensor(a))

    def _A_setup():
        B, L, D, N = (1, 2048, 576, 128)
        A_re = -(lambda _x: torch.exp(torch.as_tensor(_x)))((lambda *s: torch.randn(*s, dtype=torch.bfloat16) * 3.2)(D, N))
        A_im = torch.pi * (lambda *s: torch.randn(*s, dtype=torch.bfloat16) * 0.05)(D, N)
        B_re = (lambda *s: torch.randn(*s, dtype=torch.bfloat16) * 0.1)(D, N)
        B_im = (lambda *s: torch.randn(*s, dtype=torch.bfloat16) * 0.1)(D, N)
        C_re = (lambda *s: torch.randn(*s, dtype=torch.bfloat16) * 0.1)(D, N)
        C_im = (lambda *s: torch.randn(*s, dtype=torch.bfloat16) * 0.1)(D, N)
        log_dt = (lambda *s: torch.randn(*s, dtype=torch.bfloat16) * 0.05)(D) * 0.5 - 4.0
        Dskip = (lambda *s: torch.randn(*s, dtype=torch.bfloat16) * 0.05)(D)
        return {'u': _w((lambda *s: torch.randn(*s, dtype=torch.bfloat16) * 0.05)(B, L, D)), 'A_re': _w(A_re), 'A_im': _w(A_im), 'B_re': _w(B_re), 'B_im': _w(B_im), 'C_re': _w(C_re), 'C_im': _w(C_im), 'log_dt': _w(log_dt), 'Dskip': _w(Dskip)}
    _A_in = _A_setup()

    def _B_setup():
        B, S, D, F = (1, 2048, 576, 4608)
        return {'x': _w((lambda *s: torch.randn(*s, dtype=torch.bfloat16) * 0.05)(B, S, D)), 'w_gate': _w((lambda *s: torch.randn(*s, dtype=torch.bfloat16) * 0.8)(D, F) * D ** (-0.5)), 'w_up': _w((lambda *s: torch.randn(*s, dtype=torch.bfloat16) * 0.8)(D, F) * D ** (-0.5)), 'w_down': _w((lambda *s: torch.randn(*s, dtype=torch.bfloat16) * 0.8)(F, D) * F ** (-0.5))}
    _B_in = _B_setup()
    return {'A_u': _A_in['u'], 'A_A_re': _A_in['A_re'], 'A_A_im': _A_in['A_im'], 'A_B_re': _A_in['B_re'], 'A_B_im': _A_in['B_im'], 'A_C_re': _A_in['C_re'], 'A_C_im': _A_in['C_im'], 'A_log_dt': _A_in['log_dt'], 'A_Dskip': _A_in['Dskip'], 'B_x': _B_in['x'], 'B_w_gate': _B_in['w_gate'], 'B_w_up': _B_in['w_up'], 'B_w_down': _B_in['w_down'], 'c': _w((lambda *s: torch.randn(*s, dtype=torch.bfloat16) * 0.2)(1, 576) * 8.0), 'w_mod': _w((lambda *s: torch.randn(*s, dtype=torch.bfloat16) * 0.2)(576, 6 * 576) * 576 ** (-0.5) * 8.0)}

def reference(A_u, A_A_re, A_A_im, A_B_re, A_B_im, A_C_re, A_C_im, A_log_dt, A_Dskip, B_x, B_w_gate, B_w_up, B_w_down, c, w_mod):

    def _A_ref(u, A_re, A_im, B_re, B_im, C_re, C_im, log_dt, Dskip):
        Bsz, L, D = u.shape
        dt = torch.exp(log_dt)[:, None]
        A = A_re + 1j * A_im
        Bc = B_re + 1j * B_im
        Cc = C_re + 1j * C_im
        logdA = dt * A
        dB = dt * Bc
        l = (lambda x, dt: x.to(dt))(torch.arange(L), A_re.dtype)
        P = torch.exp(logdA[:, :, None] * l[None, None, :])
        K = torch.einsum('dn,dnl,dn->dl', Cc, P, dB).real
        L2 = 2 * L
        Kp = _pad(K, ((0, 0), (0, L)))
        up = (lambda x, *d: x.permute(*d))(u, 0, 2, 1)
        up = _pad(up, ((0, 0), (0, 0), (0, L)))
        Kf = (lambda x, axes=(-2, -1): torch.fft.rfft2(x.float(), dim=axes))(Kp[:, None, :], axes=(-2, -1))
        Uf = (lambda x, axes=(-2, -1): torch.fft.rfft2(x.float(), dim=axes))(up[:, :, None, :], axes=(-2, -1))
        Yf = Uf * Kf[None, :, :, :]
        y = (lambda x, s, axes=(-2, -1): torch.fft.irfft2(x, s=s, dim=axes).to(torch.bfloat16))(Yf, (1, L2), axes=(-2, -1))[:, :, 0, :L]
        y = (lambda x, *d: x.permute(*d))(y, 0, 2, 1) + u * Dskip[None, None, :]
        return y

    def _B_ref(x, w_gate, w_up, w_down):
        g = torch.einsum('bsd,df->bsf', x, w_gate)
        u = torch.einsum('bsd,df->bsf', x, w_up)
        h = g * u
        return torch.einsum('bsf,fd->bsd', h, w_down)
    x = A_u
    mod = (_silu(c) @ w_mod).reshape(c.shape[0], 6, 1, -1)
    sa, ca, ga, sb, cb, gb = (mod[:, 0].clone(), mod[:, 1].clone(), mod[:, 2].clone(), mod[:, 3].clone(), mod[:, 4].clone(), mod[:, 5].clone())
    h = _layernorm(x, axis=-1) * (1 + ca) + sa
    x = x + ga * _A_ref(h, A_A_re, A_A_im, A_B_re, A_B_im, A_C_re, A_C_im, A_log_dt, A_Dskip)
    h = _layernorm(x, axis=-1) * (1 + cb) + sb
    x = x + gb * _B_ref(h, B_w_gate, B_w_up, B_w_down)
    return x
```

```python
import re

TRANS = {"v_exp_f32", "v_log_f32", "v_rcp_f32", "v_rsq_f32", "v_sqrt_f32", "v_sin_f32", "v_cos_f32",
         "v_rcp_iflag_f32"}
RMW = {"v_fmac_f32", "v_pk_fmac_f16", "v_dot2c_f32_bf16", "v_fmac_f32_dpp", "v_fmaak_f32_x", "v_writelane_b32"}
SWAPS = {"v_permlane32_swap_b32", "v_permlane16_swap_b32", "v_swap_b32"}
CO2 = {"v_add_co_u32", "v_sub_co_u32", "v_subrev_co_u32", "v_addc_co_u32", "v_subb_co_u32", "v_subbrev_co_u32"}

_reg_re = re.compile(r"^(-|\|)?(abs\()?([vas])(\d+|\[(\d+):(\d+)\])\)?\|?$")


def parse_reg(tok):
    tok = tok.strip()
    if tok == "vcc":
        return [("s", 106), ("s", 107)]
    if tok == "vcc_lo":
        return [("s", 106)]
    if tok == "vcc_hi":
        return [("s", 107)]
    if tok == "exec":
        return [("s", 126), ("s", 127)]
    if tok == "m0":
        return [("s", 124)]
    m = _reg_re.match(tok)
    if not m:
        return []
    f = m.group(3)
    if m.group(5) is not None:
        return [(f, i) for i in range(int(m.group(5)), int(m.group(6)) + 1)]
    return [(f, int(m.group(4)))]


def mfma_info(mn):
    if mn in ("v_mfma_f32_32x32x16_bf16", "v_mfma_f32_32x32x16_f16"):
        return 8, "xdl"
    if mn in ("v_mfma_f32_16x16x32_bf16", "v_mfma_f32_16x16x32_f16"):
        return 4, "xdl"
    if mn == "v_mfma_f32_32x32x2_f32":
        return 16, "sgemm"
    if mn == "v_mfma_f32_16x16x4_f32":
        return 8, "sgemm"
    raise ValueError("unknown mfma " + mn)


class Ins:
    __slots__ = ("text", "mn", "kind", "wr", "rd", "ops", "dpp", "trans", "passes", "mcls", "srcc", "srcab",
                 "store_data", "slots", "lds_dma", "target")

    def __init__(self, text):
        self.text = text
        t = text.split(";")[0].strip()
        parts = t.split(None, 1)
        mn = parts[0]
        for suf in ("_e32", "_e64"):
            if mn.endswith(suf):
                mn = mn[: -len(suf)]
        self.mn = mn
        rest = parts[1] if len(parts) > 1 else ""
        ops = []
        cur = ""
        depth = 0
        for ch in rest:
            if ch in "[(":
                depth += 1
            if ch in "])":
                depth -= 1
            if ch == "," and depth == 0:
                ops.append(cur.strip())
                cur = ""
            else:
                cur += ch
        if cur.strip():
            ops.append(cur.strip())
        mods = []
        if ops:
            sp = ops[-1].split()
            ops[-1] = sp[0]
            mods = sp[1:]
        self.ops = ops
        self.wr = []
        self.rd = []
        self.dpp = any(m.startswith(("quad_perm", "row_", "wave_")) for m in mods)
        self.trans = mn in TRANS
        self.passes = 0
        self.mcls = None
        self.srcc = []
        self.srcab = []
        self.store_data = []
        self.slots = 1
        self.lds_dma = False
        self.target = None
        R = parse_reg
        if mn == "s_nop":
            self.kind = "nop"
            self.slots = int(ops[0], 0) + 1
        elif mn.startswith("v_mfma"):
            self.kind = "mfma"
            self.passes, self.mcls = mfma_info(mn)
            self.wr = R(ops[0])
            self.srcab = R(ops[1]) + R(ops[2])
            self.srcc = R(ops[3])
            self.rd = self.srcab + self.srcc
        elif mn.startswith("v_"):
            self.kind = "valu"
            base = mn[:-4] if mn.endswith("_dpp") else mn
            if base in SWAPS:
                self.wr = R(ops[0]) + R(ops[1])
                self.rd = R(ops[0]) + R(ops[1])
            elif base in CO2:
                self.wr = R(ops[0]) + R(ops[1])
                for o in ops[2:]:
                    self.rd += R(o)
            elif base == "v_nop":
                pass
            else:
                self.wr = R(ops[0])
                for o in ops[1:]:
                    self.rd += R(o)
                if base in RMW or self.dpp:
                    self.rd += R(ops[0])
        elif mn.startswith("ds_"):
            self.kind = "ds"
            if mn.startswith(("ds_read", "ds_bpermute", "ds_permute", "ds_swizzle")):
                self.wr = R(ops[0])
                for o in ops[1:]:
                    self.rd += R(o)
            else:
                for o in ops:
                    self.rd += R(o)
        elif mn.startswith("buffer_") or mn.startswith("global_"):
            self.kind = "vmem"
            lds = "lds" in mods or "_lds_" in mn
            self.lds_dma = lds
            if "load" in mn and not lds:
                self.wr = R(ops[0])
                for o in ops[1:]:
                    self.rd += R(o)
            else:
                for o in ops:
                    self.rd += R(o)
                if "store" in mn and (mn.endswith("x4") or mn.endswith("x3")):
                    self.store_data = R(ops[0]) if mn.startswith("buffer_") else R(ops[1])
            if lds:
                self.rd += [("s", 124)]
        elif mn.startswith(("s_load", "s_buffer_load", "s_memtime", "s_memrealtime", "s_atomic")):
            self.kind = "smem"
            self.wr = R(ops[0])
            for o in ops[1:]:
                self.rd += R(o)
        elif mn.startswith("s_"):
            self.kind = "salu"
            if mn.startswith(("s_cbranch", "s_branch")):
                self.target = ops[0]
            elif mn.startswith(("s_cmp", "s_waitcnt", "s_barrier", "s_endpgm", "s_setprio", "s_sleep", "s_bitcmp")):
                for o in ops:
                    self.rd += R(o)
            else:
                self.wr = R(ops[0]) if ops else []
                for o in ops[1:]:
                    self.rd += R(o)
                if "saveexec" in mn:
                    self.wr += R("exec")
        else:
            raise ValueError("unknown instr: " + text)


def need(p, c):
    n = 0
    pw = set(p.wr)
    cr = set(c.rd)
    cw = set(c.wr)
    if p.kind == "valu":
        vw = {r for r in pw if r[0] in "va"}
        sw = {r for r in pw if r[0] == "s"}
        if c.kind == "mfma" and vw & cr:
            n = max(n, 2)
        if c.kind == "valu":
            if vw & cr:
                if c.dpp or c.mn.startswith("v_permlane"):
                    n = max(n, 2)
                if c.mn in ("v_readfirstlane_b32", "v_readlane_b32"):
                    n = max(n, 1)
                if p.trans:
                    n = max(n, 1)
            if sw & cr:
                n = max(n, 4 if c.mn in ("v_readlane_b32", "v_writelane_b32") else 2)
            if ("s", 126) in sw:
                n = max(n, 5)
        if c.kind in ("vmem",) and sw & cr:
            n = max(n, 5)
        if c.kind in ("ds", "vmem") and p.trans and vw & cr:
            n = max(n, 1)
        if c.kind == "salu" and sw & cr:
            n = max(n, 1)
        if c.kind == "smem" and sw & cr:
            n = max(n, 5)
        if c.kind == "mfma" and ("s", 126) in sw:
            n = max(n, 4)
    elif p.kind == "mfma":
        idx = {2: 0, 4: 1, 8: 2, 16: 3}[p.passes]
        if c.kind == "mfma":
            if pw & set(c.srcab):
                n = max(n, ([5, 8, 12, 20] if p.mcls == "xdl" else [4, 6, 10, 18])[idx])
            ov = pw & set(c.srcc)
            if ov:
                same = (p.wr == c.srcc and p.passes == c.passes and p.mcls == c.mcls)
                if same:
                    n = max(n, [2, 0, 0, 0][idx])
                elif p.mcls == "xdl":
                    n = max(n, [4, 6, 10, 18][idx])
                else:
                    n = max(n, [2, 4, 8, 16][idx])
            elif pw & cw:
                n = max(n, ([4, 6, 10, 18] if p.mcls == "xdl" else [2, 4, 8, 16])[idx])
        elif c.kind in ("valu", "ds", "vmem"):
            if pw & (cr | cw):
                n = max(n, ([5, 8, 12, 20] if p.mcls == "xdl" else [4, 6, 10, 18])[idx])
            if c.kind == "valu" and p.mcls == "xdl" and set(p.srcc) & cw:
                n = max(n, [1, 3, 7, 15][idx])
    elif p.kind == "vmem":
        if p.store_data and set(p.store_data) & cw:
            n = max(n, 2 if c.kind in ("valu", "mfma") else 1)
    elif p.kind == "salu":
        if ("s", 124) in pw and c.lds_dma:
            n = max(n, 1)
    return n


class Kernel:
    def __init__(self, name, vgprs=None, sgprs=102, agprs=0, extra_kd=()):
        self.name = name
        self.items = []
        self.vgprs = vgprs
        self.sgprs = sgprs
        self.agprs = agprs
        self.extra_kd = list(extra_kd)
        self._lab = 0

    def __call__(self, text):
        for line in text.strip().split("\n"):
            line = line.strip()
            if not line:
                continue
            if line.startswith(";"):
                self.items.append(("c", line))
            elif line.endswith(":"):
                self.items.append(("label", line[:-1]))
            else:
                self.items.append(Ins(line))

    def newlabel(self, base="L"):
        self._lab += 1
        return "%s_%s_%d" % (self.name[:12].replace("_", ""), base, self._lab)

    def label(self, name):
        self.items.append(("label", name))

    def comment(self, t):
        self.items.append(("c", "; " + t))

    @staticmethod
    def _required(hist, c):
        dist = 0
        req = 0
        for p in reversed(hist):
            n = need(p, c)
            if n > dist:
                req = max(req, n - dist)
            dist += p.slots
            if dist >= 20:
                break
        return req

    def finalize(self):
        out = []
        hist = []
        for it in self.items:
            if isinstance(it, Ins):
                r = self._required(hist, it)
                while r > 0:
                    k = min(r, 16)
                    nop = Ins("s_nop %d" % (k - 1))
                    out.append(nop)
                    hist.append(nop)
                    r -= k
                out.append(it)
                hist.append(it)
                if it.mn in ("s_branch", "s_endpgm"):
                    hist = []
                if len(hist) > 40:
                    hist = hist[-24:]
            else:
                out.append(it)
        changed = True
        while changed:
            changed = False
            labels = {it[1]: i for i, it in enumerate(out) if not isinstance(it, Ins) and it[0] == "label"}
            for i, it in enumerate(out):
                if isinstance(it, Ins) and it.target is not None:
                    tail = [x for x in out[max(0, i - 40): i + 1] if isinstance(x, Ins)][-24:]
                    j = labels[it.target] + 1
                    h = list(tail)
                    cnt = 0
                    while j < len(out) and cnt < 22:
                        x = out[j]
                        if isinstance(x, Ins):
                            r = self._required(h, x)
                            if r > 0:
                                k = min(r, 16)
                                out.insert(j, Ins("s_nop %d" % (k - 1)))
                                changed = True
                                break
                            h.append(x)
                            cnt += x.slots
                            if x.mn in ("s_branch", "s_endpgm"):
                                break
                        j += 1
                    if changed:
                        break
        self.out = out
        mv = ma = ms = -1
        for it in out:
            if isinstance(it, Ins):
                for f, i in it.wr + it.rd:
                    if f == "v":
                        mv = max(mv, i)
                    elif f == "a":
                        ma = max(ma, i)
                    elif f == "s" and i < 102:
                        ms = max(ms, i)
        self.max_v, self.max_a, self.max_s = mv, ma, ms

    def text(self):
        self.finalize()
        L = []
        L.append(".globl %s" % self.name)
        L.append(".p2align 8")
        L.append(".type %s,@function" % self.name)
        L.append("%s:" % self.name)
        for it in self.out:
            if isinstance(it, Ins):
                L.append("    " + it.text)
            elif it[0] == "label":
                L.append(it[1] + ":")
            else:
                L.append("    " + it[1])
        return "\n".join(L) + "\n"

    def descriptor(self):
        nv = max(self.max_v + 1, 4)
        if self.vgprs:
            nv = max(nv, self.vgprs)
        acc = (nv + 3) // 4 * 4
        tot = acc + (self.max_a + 1) if self.max_a >= 0 else nv
        L = [".p2align 6", ".amdhsa_kernel %s" % self.name,
             "  .amdhsa_next_free_vgpr %d" % tot,
             "  .amdhsa_next_free_sgpr %d" % max(self.max_s + 1, 16),
             "  .amdhsa_accum_offset %d" % acc,
             "  .amdhsa_group_segment_fixed_size 0",
             "  .amdhsa_kernarg_size 144",
             "  .amdhsa_user_sgpr_count 2",
             "  .amdhsa_user_sgpr_kernarg_segment_ptr 1",
             "  .amdhsa_system_sgpr_workgroup_id_x 1"]
        L += ["  " + x for x in self.extra_kd]
        L.append(".end_amdhsa_kernel")
        return "\n".join(L) + "\n"


def build_file(header, launches, kernels):
    s = header
    for k, g, b, lds in launches:
        s += "; @launch kernel=%s grid=(%d,1,1) block=(%d,1,1) lds=%d\n" % (k, g, b, lds)
    s += '.amdgcn_target "amdgcn-amd-amdhsa--gfx950"\n.text\n'
    for k in kernels:
        s += k.text()
    s += '.section .rodata,"a"\n'
    for k in kernels:
        s += k.descriptor()
    return s


def vr(lo, n=1):
    return "v%d" % lo if n == 1 else "v[%d:%d]" % (lo, lo + n - 1)


def ar(lo, n=1):
    return "a%d" % lo if n == 1 else "a[%d:%d]" % (lo, lo + n - 1)


def sr(lo, n=1):
    return "s%d" % lo if n == 1 else "s[%d:%d]" % (lo, lo + n - 1)
```

```python
L = 2048; D = 576; F = 4608; N = 128
SZ_ACT = L * D * 2
OFF_MOD = 0
OFF_XNT = 1 << 16
OFF_KC = OFF_XNT + SZ_ACT
OFF_TT = OFF_KC + SZ_ACT
OFF_X2 = OFF_TT + SZ_ACT
OFF_H2P = OFF_X2 + SZ_ACT
OFF_WGU = OFF_H2P + SZ_ACT
SZ_WGU = 2 * D * F * 2
OFF_WDP = OFF_WGU + SZ_WGU
SZ_WDP = D * F * 2
OFF_HH = OFF_WDP + SZ_WDP
SZ_HH = L * F * 2
KA = dict(u=0, A_re=8, A_im=16, B_re=24, B_im=32, C_re=40, C_im=48, log_dt=56, Dskip=64, Bx=72,
          wg=80, wu=88, wd=96, c=104, wmod=112, out=120, dbg=128, ws=136)


def srd(k, s, base, off, size):
    if off:
        k("s_add_u32 s%d, s%d, 0x%x" % (s, base, off))
        k("s_addc_u32 s%d, s%d, 0" % (s + 1, base + 1))
    else:
        k("s_mov_b32 s%d, s%d" % (s, base))
        k("s_mov_b32 s%d, s%d" % (s + 1, base + 1))
    k("s_mov_b32 s%d, 0x%x" % (s + 2, size))
    k("s_mov_b32 s%d, 0x00020000" % (s + 3))


OFF_STAMP = 128 << 20
class Stamper:
    def __init__(self, k, on):
        self.k, self.on, self.n = k, on, 0
        if on:
            k("s_memrealtime s[56:57]")
    def stamp(self):
        if self.on:
            self.k("s_memtime s[%d:%d]" % (60 + 2 * self.n, 61 + 2 * self.n))
            self.n += 1
    def flush(self, ws, swg, swave, nw):
        if not self.on:
            return
        k = self.k
        k("s_memrealtime s[58:59]")
        k("s_waitcnt lgkmcnt(0)")
        srd(k, 52, ws, OFF_STAMP, 1 << 24)
        k("s_mul_i32 s50, %s, %d" % (swg, nw))
        k("s_add_u32 s50, s50, %s" % swave)
        k("s_lshl_b32 s50, s50, 8")
        k("v_mov_b32 v0, 0")
        for i in range(self.n + 2):
            k("v_mov_b32 v1, s%d" % (56 + 2 * i))
            k("buffer_store_dword v1, v0, s[52:55], s50 offen offset:%d" % (4 * i))
        k("s_waitcnt vmcnt(0)")
```

```python
from asm import *
from common import *

LOG2E = 0x3fb8aa3b
INV2PI = 0x3e22f983
N_LN1 = 64
N_MOD = 54
N_KG = 576

def dpp_sum8(k, v, t):
    k("v_add_f32_dpp v%d, v%d, v%d quad_perm:[1,0,3,2] row_mask:0xf bank_mask:0xf" % (t, v, v))
    k("v_add_f32_dpp v%d, v%d, v%d quad_perm:[2,3,0,1] row_mask:0xf bank_mask:0xf" % (v, t, t))
    k("v_add_f32_dpp v%d, v%d, v%d row_half_mirror row_mask:0xf bank_mask:0xf" % (t, v, v))
    k("v_mov_b32 v%d, v%d" % (v, t))

def ln_stats_tail(k, vsum, vm, vr_, t):
    pass

def role_ln1(k, Lend):
    PITCH = 1184
    k("s_load_dwordx2 s[4:5], s[0:1], %d" % KA["u"])
    k("s_load_dwordx2 s[6:7], s[0:1], %d" % KA["ws"])
    k("v_lshrrev_b32 v1, 3, v0")
    k("v_and_b32 v2, 7, v0")
    k("v_mul_u32_u24 v3, 1152, v1")
    k("v_lshl_add_u32 v3, v2, 4, v3")
    k("s_mul_i32 s16, s2, %d" % (32 * 1152))
    k("s_waitcnt lgkmcnt(0)")
    srd(k, 8, 4, 0, SZ_ACT)
    srd(k, 12, 6, OFF_XNT, SZ_ACT)
    X = 8
    for i in range(9):
        k("buffer_load_dwordx4 %s, v3, s[8:11], s16 offen offset:%d" % (vr(X + 4 * i, 4), 128 * i))
    F = 44
    k("v_mov_b32 v4, 0")
    k("v_mov_b32 v5, 0")
    for i in range(9):
        k("s_waitcnt vmcnt(%d)" % (8 - i))
        for r in range(4):
            p = X + 4 * i + r
            f = F + 8 * i + 2 * r
            k("v_lshlrev_b32 v%d, 16, v%d" % (f, p))
            k("v_and_b32 v%d, 0xffff0000, v%d" % (f + 1, p))
            k("v_pk_add_f32 v[4:5], v[4:5], v[%d:%d]" % (f, f + 1))
    k("v_add_f32 v4, v4, v5")
    dpp_sum8(k, 4, 5)
    k("v_mul_f32 v4, 0x%08x, v4" % fbits(1.0 / 576))
    k("v_mov_b32 v5, v4")
    k("v_mov_b32 v6, 0")
    k("v_mov_b32 v7, 0")
    for e in range(0, 72, 2):
        k("v_pk_add_f32 v[116:117], v[%d:%d], v[4:5] neg_lo:[0,1] neg_hi:[0,1]" % (F + e, F + e + 1))
        k("v_pk_fma_f32 v[6:7], v[116:117], v[116:117], v[6:7]")
    k("v_add_f32 v6, v6, v7")
    dpp_sum8(k, 6, 7)
    k("v_mul_f32 v6, 0x%08x, v6" % fbits(1.0 / 576))
    k("v_cvt_pk_bf16_f32 v6, 0, v6")
    k("v_add_f32 v6, 0x%08x, v6" % fbits(1e-5))
    k("v_cvt_pk_bf16_f32 v6, 0, v6")
    k("v_sqrt_f32 v6, v6")
    k("v_cvt_pk_bf16_f32 v6, 0, v6")
    k("v_rcp_f32 v6, v6")
    k("v_cvt_pk_bf16_f32 v4, 0, v4")
    k("v_mov_b32 v5, v4")
    k("v_mov_b32 v7, v6")
    for e in range(0, 72, 2):
        f = F + e
        k("v_pk_add_f32 v[%d:%d], v[%d:%d], v[4:5] neg_lo:[0,1] neg_hi:[0,1]" % (f, f + 1, f, f + 1))
        k("v_cvt_pk_bf16_f32 v%d, 0, v%d" % (f, f))
        k("v_cvt_pk_bf16_f32 v%d, 0, v%d" % (f + 1, f + 1))
        k("v_pk_mul_f32 v[%d:%d], v[%d:%d], v[6:7]" % (f, f + 1, f, f + 1))
        k("v_cvt_pk_bf16_f32 v%d, v%d, v%d" % (X + e // 2, f, f + 1))
    k("v_mul_u32_u24 v3, %d, v1" % PITCH)
    k("v_lshl_add_u32 v3, v2, 4, v3")
    for i in range(9):
        k("ds_write_b128 v3, %s offset:%d" % (vr(X + 4 * i, 4), 128 * i))
    k("v_and_b32 v1, 63, v0")
    k("v_lshrrev_b32 v2, 6, v0")
    k("v_lshrrev_b32 v4, 4, v1")
    k("v_bfe_u32 v5, v1, 2, 2")
    k("v_lshl_add_u32 v5, v4, 3, v5")
    k("v_mul_u32_u24 v5, %d, v5" % PITCH)
    k("v_and_b32 v6, 3, v1")
    k("v_lshl_add_u32 v5, v6, 3, v5")
    k("v_lshl_add_u32 v5, v2, 5, v5")
    k("v_and_b32 v6, 15, v1")
    k("v_lshlrev_b32 v6, 6, v6")
    k("v_lshl_add_u32 v6, v4, 4, v6")
    k("v_lshl_add_u32 v6, v2, 10, v6")
    k("s_mul_i32 s16, s2, 36864")
    k("s_waitcnt lgkmcnt(0)")
    k("s_barrier")
    for i in range(9):
        k("ds_read_b64_tr_b16 %s, v5 offset:%d" % (vr(X + 4 * i, 2), 128 * i))
        k("ds_read_b64_tr_b16 %s, v5 offset:%d" % (vr(X + 4 * i + 2, 2), 128 * i + 4 * PITCH))
    for i in range(9):
        k("s_waitcnt lgkmcnt(%d)" % min(15, 16 - 2 * i))
        k("s_add_u32 s17, s16, %d" % (4096 * i))
        k("buffer_store_dwordx4 %s, v6, s[12:15], s17 offen" % vr(X + 4 * i, 4))
    k("s_endpgm")

def role_mod(k, Lend):
    k("s_load_dwordx2 s[4:5], s[0:1], %d" % KA["wmod"])
    k("s_load_dwordx2 s[6:7], s[0:1], %d" % KA["ws"])
    k("s_load_dwordx2 s[16:17], s[0:1], %d" % KA["c"])
    k("v_lshrrev_b32 v1, 3, v0")
    k("v_and_b32 v2, 7, v0")
    k("v_mul_u32_u24 v3, 6912, v1")
    k("v_lshl_add_u32 v3, v2, 4, v3")
    k("s_lshl_b32 s24, s3, 7")
    k("v_lshlrev_b32 v4, 1, v0")
    k("s_waitcnt lgkmcnt(0)")
    srd(k, 8, 4, 0, 576 * 3456 * 2)
    srd(k, 12, 6, OFF_MOD, 3456 * 4)
    srd(k, 20, 16, 0, 576 * 2)
    for i in range(3):
        k("buffer_load_ushort v%d, v4, s[20:23], 0 offen offset:%d" % (5 + i, 512 * i))
    W = 16
    for i in range(18):
        k("s_add_u32 s25, s24, %d" % (i * 32 * 6912))
        k("buffer_load_dwordx4 %s, v3, s[8:11], s25 offen" % vr(W + 4 * i, 4))
    k("v_lshlrev_b32 v4, 2, v0")
    k("s_waitcnt vmcnt(18)")
    for i in range(3):
        c = 5 + i
        k("v_lshlrev_b32 v%d, 16, v%d" % (c, c))
        k("v_mul_f32 v8, 0x%08x, v%d" % (fbits(-1.4426950408889634), c))
        k("v_exp_f32 v8, v8")
        k("v_add_f32 v8, 1.0, v8")
        k("v_rcp_f32 v8, v8")
        k("v_mul_f32 v8, v8, v%d" % c)
        k("v_cvt_pk_bf16_f32 v8, 0, v8")
        k("ds_write_b32 v4, v8 offset:%d" % (1024 * i))
    k("v_lshlrev_b32 v4, 2, v1")
    k("s_waitcnt lgkmcnt(0)")
    k("s_barrier")
    S = 88
    for i in range(18):
        k("ds_read_b32 v%d, v4 offset:%d" % (S + i, 128 * i))
    A = 108
    for c in range(8):
        k("v_mov_b32 v%d, 0" % (A + c))
    k("s_waitcnt lgkmcnt(0)")
    for i in range(18):
        k("s_waitcnt vmcnt(%d)" % (17 - i))
        for r in range(4):
            p = W + 4 * i + r
            k("v_lshlrev_b32 v8, 16, v%d" % p)
            k("v_and_b32 v9, 0xffff0000, v%d" % p)
            k("v_fmac_f32 v%d, v8, v%d" % (A + 2 * r, S + i))
            k("v_fmac_f32 v%d, v9, v%d" % (A + 2 * r + 1, S + i))
    k("v_lshlrev_b32 v4, 8, v1")
    k("v_lshl_add_u32 v4, v2, 5, v4")
    k("ds_write_b128 v4, %s offset:4096" % vr(A, 4))
    k("ds_write_b128 v4, %s offset:4112" % vr(A + 4, 4))
    k("s_waitcnt lgkmcnt(0)")
    k("s_barrier")
    k("v_cmp_gt_u32 vcc, 64, v0")
    k("s_and_saveexec_b64 s[26:27], vcc")
    k("s_cbranch_execz " + Lend)
    k("v_lshlrev_b32 v4, 2, v0")
    for i in range(32):
        k("ds_read_b32 v%d, v4 offset:%d" % (W + i, 4096 + 256 * i))
    k("s_waitcnt lgkmcnt(0)")
    n = 32
    while n > 1:
        for i in range(n // 2):
            k("v_add_f32 v%d, v%d, v%d" % (W + i, W + i, W + i + n // 2))
        n //= 2
    k("v_cvt_pk_bf16_f32 v%d, 0, v%d" % (W, W))
    k("s_lshl_b32 s24, s3, 8")
    k("buffer_store_dword v%d, v4, s[12:15], s24 offen" % W)
    k("s_endpgm")

def fbits(x):
    import struct
    return struct.unpack("<I", struct.pack("<f", x))[0]

def role_kgen(k, Lend, stamp=False):
    st_ = Stamper(k, stamp)
    st_.stamp()
    T0 = 2048
    for i, nm in enumerate(["A_re", "A_im", "B_re", "B_im", "C_re", "C_im"]):
        k("s_load_dwordx2 s[%d:%d], s[0:1], %d" % (4 + 2 * i, 5 + 2 * i, KA[nm]))
    k("s_load_dwordx2 s[16:17], s[0:1], %d" % KA["log_dt"])
    k("s_load_dwordx2 s[18:19], s[0:1], %d" % KA["ws"])
    k("v_and_b32 v1, 127, v0")
    k("v_lshlrev_b32 v1, 1, v1")
    k("s_lshl_b32 s20, s3, 8")
    k("s_lshl_b32 s21, s3, 1")
    k("v_mov_b32 v2, s21")
    k("s_waitcnt lgkmcnt(0)")
    for i in range(6):
        srd(k, 24, 4 + 2 * i, 0, 576 * 128 * 2)
        k("buffer_load_ushort v%d, v1, s[24:27], s20 offen" % (4 + i))
    srd(k, 24, 16, 0, 576 * 2)
    k("buffer_load_ushort v10, v2, s[24:27], 0 offen")
    srd(k, 28, 18, OFF_KC, SZ_ACT)
    k("v_and_b32 v16, 31, v0")
    k("v_bfe_u32 v17, v0, 5, 1")
    k("v_lshlrev_b32 v18, 3, v16")
    k("v_cvt_f32_u32 v18, v18")
    k("v_lshrrev_b32 v19, 3, v16")
    k("v_and_b32 v20, 3, v16")
    k("v_bfe_u32 v21, v16, 2, 1")
    k("v_lshl_add_u32 v22, v21, 2, v20")
    k("v_lshlrev_b32 v23, 1, v20")
    k("v_add_u32 v23, 256, v23")
    k("v_lshlrev_b32 v24, 8, v20")
    k("v_cmp_gt_u32 vcc, 2, v20")
    k("v_cndmask_b32 v23, v24, v23, vcc")
    k("v_lshl_add_u32 v23, v21, 2, v23")
    k("v_lshlrev_b32 v24, 9, v20")
    k("v_add_u32 v24, 1024, v24")
    k("v_lshl_add_u32 v24, v21, 8, v24")
    k("v_cmp_eq_u32 vcc, 1, v19")
    k("v_cndmask_b32 v22, v22, v23, vcc")
    k("v_cmp_eq_u32 vcc, 2, v19")
    k("v_cndmask_b32 v22, v22, v24, vcc")
    k("v_cvt_f32_u32 v19, v22")
    k("s_waitcnt vmcnt(0)")
    st_.stamp()
    for i in range(7):
        k("v_lshlrev_b32 v%d, 16, v%d" % (4 + i, 4 + i))
    k("v_mul_f32 v10, 0x%08x, v10" % LOG2E)
    k("v_exp_f32 v10, v10")
    k("v_cvt_pk_bf16_f32 v10, 0, v10")
    k("v_mul_f32 v4, v10, v4")
    k("v_mul_f32 v5, v10, v5")
    k("v_mul_f32 v6, v10, v6")
    k("v_mul_f32 v7, v10, v7")
    k("v_mul_f32 v4, 0x%08x, v4" % LOG2E)
    k("v_mul_f32 v5, 0x%08x, v5" % INV2PI)
    k("v_mul_f32 v11, v8, v6")
    k("v_fma_f32 v11, -v9, v7, v11")
    k("v_mul_f32 v12, v8, v7")
    k("v_fma_f32 v12, v9, v6, v12")
    k("v_lshlrev_b32 v3, 1, v1")
    k("ds_write_b32 v3, v4 offset:0")
    k("ds_write_b32 v3, v5 offset:512")
    k("ds_write_b32 v3, v11 offset:1024")
    k("ds_write_b32 v3, v12 offset:1536")
    k("v_lshrrev_b32 v3, 6, v0")
    k("v_lshlrev_b32 v3, 7, v3")
    k("v_lshl_add_u32 v3, v17, 4, v3")
    k("s_waitcnt lgkmcnt(0)")
    k("s_barrier")
    st_.stamp()
    ACC = 32
    PZ = 48
    XH, XL, YH, YL = 64, 68, 72, 76
    t = 80
    for st in range(4):
        for a in range(4):
            k("ds_read_b128 %s, v3 offset:%d" % (vr(PZ + 4 * a, 4), 512 * a + 32 * st))
        k("s_waitcnt lgkmcnt(0)")
        for q in range(4):
            zr, zi, cr, ci = PZ + q, PZ + 4 + q, PZ + 8 + q, PZ + 12 + q
            b = t + 12 * (q & 1)
            k("v_mul_f32 v%d, v%d, v18" % (b, zr))
            k("v_mul_f32 v%d, v%d, v18" % (b + 1, zi))
            k("v_mul_f32 v%d, v%d, v19" % (b + 4, zr))
            k("v_mul_f32 v%d, v%d, v19" % (b + 5, zi))
            k("v_exp_f32 v%d, v%d" % (b, b))
            k("v_fract_f32 v%d, v%d" % (b + 1, b + 1))
            k("v_exp_f32 v%d, v%d" % (b + 4, b + 4))
            k("v_fract_f32 v%d, v%d" % (b + 5, b + 5))
            k("v_cos_f32 v%d, v%d" % (b + 2, b + 1))
            k("v_sin_f32 v%d, v%d" % (b + 3, b + 1))
            k("v_cos_f32 v%d, v%d" % (b + 6, b + 5))
            k("v_sin_f32 v%d, v%d" % (b + 7, b + 5))
            k("v_mul_f32 v%d, v%d, v%d" % (b + 2, b + 2, b))
            k("v_mul_f32 v%d, v%d, v%d" % (b + 3, b + 3, b))
            k("v_mul_f32 v%d, v%d, v%d" % (b + 6, b + 6, b + 4))
            k("v_mul_f32 v%d, v%d, v%d" % (b + 7, b + 7, b + 4))
            k("v_mul_f32 v%d, v%d, v%d" % (b + 8, cr, b + 6))
            k("v_fma_f32 v%d, -v%d, v%d, v%d" % (b + 8, ci, b + 7, b + 8))
            k("v_mul_f32 v%d, -v%d, v%d" % (b + 9, cr, b + 7))
            k("v_fma_f32 v%d, -v%d, v%d, v%d" % (b + 9, ci, b + 6, b + 9))
            for (re, im, H, Lo) in ((b + 2, b + 3, YH + q, YL + q), (b + 8, b + 9, XH + q, XL + q)):
                k("v_cvt_pk_bf16_f32 v%d, v%d, v%d" % (H, re, im))
                k("v_lshlrev_b32 v%d, 16, v%d" % (b + 10, H))
                k("v_and_b32 v%d, 0xffff0000, v%d" % (b + 11, H))
                k("v_sub_f32 v%d, v%d, v%d" % (re, re, b + 10))
                k("v_sub_f32 v%d, v%d, v%d" % (im, im, b + 11))
                k("v_cvt_pk_bf16_f32 v%d, v%d, v%d" % (Lo, re, im))
        a = vr(ACC, 16)
        k("v_mfma_f32_32x32x16_bf16 %s, %s, %s, %s" % (a, vr(XH, 4), vr(YH, 4), "0" if st == 0 else a))
        k("v_mfma_f32_32x32x16_bf16 %s, %s, %s, %s" % (a, vr(XL, 4), vr(YH, 4), a))
        k("v_mfma_f32_32x32x16_bf16 %s, %s, %s, %s" % (a, vr(XH, 4), vr(YL, 4), a))
    st_.stamp()
    P0 = T0 + 12288
    k("v_and_b32 v6, 63, v0")
    k("v_lshrrev_b32 v7, 6, v0")
    k("v_lshlrev_b32 v8, 4, v6")
    k("v_mul_u32_u24 v9, 3072, v7")
    k("v_add_u32 v9, v9, v8")
    for g in range(3):
        k("ds_write_b128 v9, %s offset:%d" % (vr(ACC + 4 * g, 4), P0 + 1024 * g))
    k("v_lshl_add_u32 v8, v7, 2, v8")
    k("v_lshlrev_b32 v4, 5, v16")
    k("v_lshl_add_u32 v5, v17, 10, v4")
    k("v_lshl_add_u32 v4, v17, 4, v4")
    k("v_readfirstlane_b32 s33, v7")
    k("s_lshl_b32 s34, s33, 2")
    k("s_lshl_b32 s35, s33, 3")
    k("s_add_u32 s35, s35, 1024")
    k("s_lshl_b32 s36, s33, 10")
    k("s_cmp_lt_u32 s33, 2")
    k("s_cselect_b32 s35, s35, s36")
    k("s_lshl_b32 s36, s33, 11")
    k("s_add_u32 s36, s36, 4096")
    k("v_add_u32 v10, s34, v4")
    k("v_add_u32 v11, s35, v4")
    k("v_add_u32 v12, s36, v5")
    k("s_waitcnt lgkmcnt(0)")
    k("s_barrier")
    for g in range(3):
        for w in range(4):
            k("ds_read_b32 v%d, v8 offset:%d" % (64 + 4 * g + w, P0 + 3072 * w + 1024 * g))
    k("s_waitcnt lgkmcnt(0)")
    for g in range(3):
        b = 64 + 4 * g
        k("v_add_f32 v%d, v%d, v%d" % (b, b, b + 1))
        k("v_add_f32 v%d, v%d, v%d" % (b + 2, b + 2, b + 3))
        k("v_add_f32 v%d, v%d, v%d" % (b, b, b + 2))
        k("ds_write_b32 v%d, v%d offset:%d" % (10 + g, b, T0))
    k("v_lshlrev_b32 v6, 3, v0")
    for j in range(8):
        x = 48 + j
        k("v_add_u32 v%d, %d, v6" % (x, 7 - j))
        k("v_cvt_f32_u32 v%d, v%d" % (x, x))
        k("v_cvt_pk_bf16_f32 v%d, 0, v%d" % (x, x))
        k("v_cvt_u32_f32 v%d, v%d" % (x, x))
        k("v_lshlrev_b32 v%d, 2, v%d" % (x, x))
    k("s_waitcnt lgkmcnt(0)")
    k("s_barrier")
    st_.stamp()
    for j in range(8):
        k("ds_read_b32 v%d, v%d offset:%d" % (56 + j, 48 + j, T0))
    k("v_lshlrev_b32 v6, 4, v0")
    k("s_lshl_b32 s20, s3, 12")
    k("s_waitcnt lgkmcnt(0)")
    for j in range(4):
        k("v_cvt_pk_bf16_f32 v%d, v%d, v%d" % (64 + j, 56 + 2 * j, 57 + 2 * j))
    k("buffer_store_dwordx4 v[64:67], v6, s[28:31], s20 offen")
    if stamp:
        k("s_waitcnt vmcnt(0)")
        st_.stamp()
        k("v_lshrrev_b32 v1, 6, v0")
        k("v_readfirstlane_b32 s33, v1")
        st_.flush(18, "s3", "s33", 4)
    k("s_endpgm")

def role_pack_wgu(k, Lend, G=0):
    k("s_load_dwordx2 s[4:5], s[0:1], %d" % KA["wg"])
    k("s_load_dwordx2 s[6:7], s[0:1], %d" % KA["wu"])
    k("s_load_dwordx2 s[8:9], s[0:1], %d" % KA["ws"])
    k("v_lshrrev_b32 v1, 6, v0")
    k("v_and_b32 v0, 63, v0")
    k("v_readfirstlane_b32 s10, v1")
    k("s_lshl_b32 s11, s3, 2")
    k("s_add_u32 s11, s11, s10")
    k("s_mul_i32 s12, s11, 58255")
    k("s_lshr_b32 s12, s12, 22")
    k("s_mul_i32 s13, s12, 72")
    k("s_sub_u32 s13, s11, s13")
    k("v_lshrrev_b32 v1, 3, v0")
    k("v_mul_u32_u24 v1, 9216, v1")
    k("v_and_b32 v2, 7, v0")
    k("v_lshl_add_u32 v1, v2, 4, v1")
    k("s_mul_i32 s14, s12, %d" % (32 * 9216))
    k("s_lshl_b32 s15, s13, 7")
    k("s_add_u32 s14, s14, s15")
    k("s_lshl_b32 s15, s10, 13")
    k("s_waitcnt lgkmcnt(0)")
    srd(k, 16, 4, 0, D * F * 2)
    srd(k, 20, 6, 0, D * F * 2)
    srd(k, 24, 8, OFF_WGU, SZ_WGU)
    for mat in range(2):
        for i in range(4):
            k("s_add_u32 s28, s15, %d" % (mat * 4096 + i * 1024))
            k("s_mov_b32 m0, s28")
            k("s_add_u32 s28, s14, %d" % (i * 8 * 9216))
            k("buffer_load_dwordx4 v1, s[%d:%d], s28 offen lds" % (16 + 4 * mat, 19 + 4 * mat))
    k("v_bfe_u32 v2, v0, 4, 1")
    k("v_lshlrev_b32 v2, 12, v2")
    k("v_lshrrev_b32 v3, 5, v0")
    k("v_lshl_add_u32 v2, v3, 10, v2")
    k("v_bfe_u32 v3, v0, 2, 2")
    k("v_lshl_add_u32 v2, v3, 7, v2")
    k("v_and_b32 v3, 1, v0")
    k("v_lshl_add_u32 v2, v3, 4, v2")
    k("v_bfe_u32 v3, v0, 1, 1")
    k("v_lshl_add_u32 v2, v3, 3, v2")
    k("v_add_u32 v2, s15, v2")
    k("v_lshlrev_b32 v3, 4, v0")
    for b in range(4):
        k("s_lshl_b32 s28, s13, 2")
        k("s_add_u32 s28, s28, %d" % b)
        if G == 0:
            k("s_mul_i32 s28, s28, 36")
            k("s_lshl_b32 s29, s12, 1")
            k("s_add_u32 s28, s28, s29")
            k("s_lshl_b32 s%d, s28, 10" % (32 + 2 * b))
            k("s_add_u32 s%d, s%d, 1024" % (33 + 2 * b, 32 + 2 * b))
        else:
            k("s_mul_i32 s29, s28, 7282")
            k("s_lshr_b32 s29, s29, 16")
            k("s_mul_i32 s30, s29, 9")
            k("s_sub_u32 s30, s28, s30")
            k("s_mul_i32 s29, s29, 324")
            k("s_lshl_b32 s31, s12, 1")
            k("s_mul_i32 s28, s31, %d" % G)
            k("s_add_u32 s28, s28, s30")
            k("s_mul_i32 s40, s30, 36")
            k("s_add_u32 s40, s40, s31")
            k("s_cmp_lt_u32 s30, %d" % G)
            k("s_cselect_b32 s28, s28, s40")
            k("s_cselect_b32 s41, %d, 1" % G)
            k("s_add_u32 s28, s28, s29")
            k("s_lshl_b32 s%d, s28, 10" % (32 + 2 * b))
            k("s_lshl_b32 s41, s41, 10")
            k("s_add_u32 s%d, s%d, s41" % (33 + 2 * b, 32 + 2 * b))
    k("s_waitcnt vmcnt(0)")
    R = 8
    n = 0
    for ksl in range(2):
        for b in range(4):
            for hf in range(2):
                k("ds_read_b64_tr_b16 %s, v2 offset:%d" % (vr(R + 4 * n + 2 * hf, 2), ksl * 2048 + hf * 512 + b * 32))
            n += 1
    n = 0
    for ksl in range(2):
        for b in range(4):
            k("s_waitcnt lgkmcnt(%d)" % (14 - 2 * n))
            k("buffer_store_dwordx4 %s, v3, s[24:27], s%d offen" % (vr(R + 4 * n, 4), 32 + 2 * b + ksl))
            n += 1
    k("s_endpgm")

def role_pack_wd(k, Lend):
    k("s_load_dwordx2 s[4:5], s[0:1], %d" % KA["wd"])
    k("s_load_dwordx2 s[8:9], s[0:1], %d" % KA["ws"])
    k("v_lshrrev_b32 v1, 6, v0")
    k("v_and_b32 v0, 63, v0")
    k("v_readfirstlane_b32 s10, v1")
    k("s_lshl_b32 s11, s3, 2")
    k("s_add_u32 s11, s11, s10")
    k("s_mul_i32 s12, s11, 7282")
    k("s_lshr_b32 s12, s12, 16")
    k("s_mul_i32 s13, s12, 9")
    k("s_sub_u32 s13, s11, s13")
    k("v_lshrrev_b32 v1, 3, v0")
    k("v_mul_u32_u24 v1, 1152, v1")
    k("v_and_b32 v2, 7, v0")
    k("v_lshl_add_u32 v1, v2, 4, v1")
    k("s_mul_i32 s14, s12, %d" % (64 * 1152))
    k("s_lshl_b32 s15, s13, 7")
    k("s_add_u32 s14, s14, s15")
    k("s_lshl_b32 s15, s10, 13")
    k("s_waitcnt lgkmcnt(0)")
    srd(k, 16, 4, 0, D * F * 2)
    srd(k, 24, 8, OFF_WDP, SZ_WDP)
    for i in range(8):
        k("s_add_u32 s28, s15, %d" % (i * 1024))
        k("s_mov_b32 m0, s28")
        k("s_add_u32 s28, s14, %d" % (i * 8 * 1152))
        k("buffer_load_dwordx4 v1, s[16:19], s28 offen lds")
    k("v_lshrrev_b32 v2, 4, v0")
    k("v_lshlrev_b32 v2, 10, v2")
    k("v_bfe_u32 v3, v0, 2, 2")
    k("v_lshl_add_u32 v2, v3, 7, v2")
    k("v_and_b32 v3, 3, v0")
    k("v_lshl_add_u32 v2, v3, 3, v2")
    k("v_add_u32 v2, s15, v2")
    k("v_lshlrev_b32 v3, 4, v0")
    k("s_mul_i32 s28, s13, 144")
    k("s_lshl_b32 s29, s12, 1")
    k("s_add_u32 s28, s28, s29")
    k("s_lshl_b32 s28, s28, 12")
    k("s_add_u32 s29, s28, 4096")
    k("s_waitcnt vmcnt(0)")
    R = 8
    n = 0
    for ksl in range(2):
        for db in range(4):
            for hf in range(2):
                k("ds_read_b64_tr_b16 %s, v2 offset:%d" % (vr(R + 4 * n + 2 * hf, 2), ksl * 4096 + hf * 512 + db * 32))
            n += 1
    n = 0
    for ksl in range(2):
        for db in range(4):
            k("s_waitcnt lgkmcnt(%d)" % (14 - 2 * n))
            k("buffer_store_dwordx4 %s, v3, s[24:27], s%d offen offset:%d" % (vr(R + 4 * n, 4), 28 + ksl, db * 1024))
            n += 1
    k("s_endpgm")

def dispatch(k, roles):
    Lend = k.newlabel("end")
    labs = [k.newlabel("role") for _ in roles]
    base = 0
    for (cnt, fn), lab in zip(roles, labs):
        k("s_sub_u32 s3, s2, %d" % base)
        k("s_cmp_lt_u32 s2, %d" % (base + cnt))
        k("s_cbranch_scc1 " + lab)
        base += cnt
    k.label(Lend)
    k("s_endpgm")
    for (cnt, fn), lab in zip(roles, labs):
        k.label(lab)
        fn(k, Lend)
    return base

def gen_k1(name="pre_kernel", G=0):
    k = Kernel(name)
    tot = dispatch(k, [(N_LN1, role_ln1), (N_MOD, role_mod), (N_KG, role_kgen),
                       (324, lambda k, L: role_pack_wgu(k, L, G)), (162, role_pack_wd)])
    return k, (name, tot, 256, 38 * 1024)

if __name__ == "__main__":
    k, l = gen_k1()
    open("t_k1.s", "w").write(build_file("; k1 test\n", [l], [k]))
    print(k.max_v, k.max_s)
    ks = []; ls = []
    for nm, role in [("rln1", (N_LN1, role_ln1)), ("rmod", (N_MOD, role_mod)), ("rkg", (N_KG, lambda k, L: role_kgen(k, L, True))), ("rwgu", (324, role_pack_wgu)), ("rwd", (162, role_pack_wd))]:
        k = Kernel(nm + "_kernel")
        tot = dispatch(k, [role])
        ks.append(k); ls.append((k.name, tot, 256, 38 * 1024))
    open("t_k1r.s", "w").write(build_file("; k1 roles\n", ls, ks))
```

```python
from asm import *
from common import *
from k4 import Cnt

UP = 17
US = 274
KP = 15
K0 = 8 * US * 16
LDS_K2 = K0 + (KP + 256 + 1) * 16

def gen_k2(name="conv_kernel", stamp=False):
    k = Kernel(name)
    st = Stamper(k, stamp)
    st.stamp()
    Lend = k.newlabel("end")
    k("s_cmp_ge_u32 s2, 576")
    k("s_cbranch_scc1 " + Lend)
    k("s_load_dwordx2 s[4:5], s[0:1], %d" % KA["ws"])
    k("s_load_dwordx2 s[6:7], s[0:1], %d" % KA["Dskip"])
    k("s_and_b32 s3, s2, 7")
    k("s_mul_i32 s3, s3, 72")
    k("s_lshr_b32 s20, s2, 3")
    k("s_add_u32 s3, s3, s20")
    k("s_lshl_b32 s20, s3, 2")
    k("s_lshr_b32 s21, s3, 1")
    k("s_lshl_b32 s21, s21, 2")
    k("v_mul_u32_u24 v1, 36864, v0")
    k("v_lshlrev_b32 v2, 4, v0")
    k("s_waitcnt lgkmcnt(0)")
    k("s_load_dword s24, s[4:5], s20")
    k("s_add_u32 s22, s20, %d" % (576 * 4))
    k("s_load_dword s25, s[4:5], s22")
    k("s_add_u32 s22, s20, %d" % (1152 * 4))
    k("s_load_dword s26, s[4:5], s22")
    k("s_load_dword s27, s[6:7], s21")
    srd(k, 8, 4, OFF_XNT, SZ_ACT)
    srd(k, 12, 4, OFF_KC, SZ_ACT)
    srd(k, 16, 4, OFF_TT, SZ_ACT)
    k("s_lshl_b32 s22, s3, 6")
    P = 8
    for c in range(4):
        k("buffer_load_dwordx4 %s, v1, s[8:11], s22 offen offset:%d" % (vr(P + 4 * c, 4), 16 * c))
    k("s_add_u32 s23, s22, 36864")
    k("buffer_load_dwordx4 %s, v1, s[8:11], s23 offen" % vr(P + 16, 4))
    k("s_lshl_b32 s23, s3, 12")
    k("s_mov_b32 m0, %d" % (K0 + KP * 16))
    for i in range(4):
        k("buffer_load_dwordx4 v2, s[12:15], s23 offen offset:%d lds" % (1024 * i))
    for r in range(4):
        k("v_mov_b32 v%d, 0" % (4 + r))
    k("v_cmp_gt_u32 vcc, %d, v0" % UP)
    k("s_and_saveexec_b64 s[28:29], vcc")
    for s in range(8):
        k("ds_write_b128 v2, v[4:7] offset:%d" % (s * US * 16))
    k("s_mov_b64 exec, s[28:29]")
    k("v_cmp_gt_u32 vcc, %d, v0" % KP)
    k("s_and_saveexec_b64 s[28:29], vcc")
    k("ds_write_b128 v2, v[4:7] offset:%d" % K0)
    k("s_mov_b64 exec, s[28:29]")
    k("s_waitcnt lgkmcnt(0)")
    k("v_mov_b32 v4, s25")
    k("v_add_f32 v4, 1.0, v4")
    k("v_cvt_pk_bf16_f32 v4, 0, v4")
    k("v_mov_b32 v5, v4")
    k("v_mov_b32 v6, s24")
    k("v_mov_b32 v7, s24")
    k("s_bitcmp1_b32 s3, 0")
    k("s_lshl_b32 s30, s27, 16")
    k("s_and_b32 s31, s27, 0xffff0000")
    k("s_bitcmp1_b32 s3, 0")
    k("s_cselect_b32 s27, s31, s30")
    st.stamp()
    T = 28
    for c in range(5):
        k("s_waitcnt vmcnt(%d)" % (8 - c))
        for r in range(4):
            p = P + 4 * c + r
            t = T + 2 * (r & 1)
            k("v_lshlrev_b32 v%d, 16, v%d" % (t, p))
            k("v_and_b32 v%d, 0xffff0000, v%d" % (t + 1, p))
            k("v_pk_mul_f32 v[%d:%d], v[%d:%d], v[4:5]" % (t, t + 1, t, t + 1))
            k("v_cvt_pk_bf16_f32 v%d, 0, v%d" % (t, t))
            k("v_cvt_pk_bf16_f32 v%d, 0, v%d" % (t + 1, t + 1))
            k("v_pk_add_f32 v[%d:%d], v[%d:%d], v[6:7]" % (t, t + 1, t, t + 1))
            k("v_cvt_pk_bf16_f32 v%d, v%d, v%d" % (p, t, t + 1))
    Q = 32
    for i in range(19):
        k("v_alignbit_b32 v%d, v%d, v%d, 16" % (Q + i, P + i + 1, P + i))
    k("v_lshlrev_b32 v3, 6, v0")
    for phi in range(8):
        sg = phi + 1
        for c in range(4):
            base = (Q + 4 * c + (sg - 1) // 2) if sg & 1 else (P + 4 * c + sg // 2)
            off = (phi * US + UP + c) * 16
            if base % 2 == 0:
                k("ds_write_b128 v3, %s offset:%d" % (vr(base, 4), off))
            else:
                k("ds_write_b32 v3, v%d offset:%d" % (base, off))
                k("ds_write_b64 v3, %s offset:%d" % (vr(base + 1, 2), off + 4))
                k("ds_write_b32 v3, v%d offset:%d" % (base + 3, off + 12))
    k("v_cmp_eq_u32 vcc, 0, v0")
    k("s_and_saveexec_b64 s[28:29], vcc")
    k("v_lshlrev_b32 v28, 16, v%d" % P)
    for phi in range(8):
        sg = phi + 1
        off = (phi * US + UP - 1) * 16
        for w in range(4):
            i0 = sg - 8 + 2 * w
            if i0 + 1 < 0:
                continue
            if i0 == -1:
                src = 28
            elif i0 % 2 == 0:
                src = P + i0 // 2
            else:
                src = Q + (i0 - 1) // 2
            k("ds_write_b32 v3, v%d offset:%d" % (src, off + 4 * w))
    k("s_mov_b64 exec, s[28:29]")
    k("v_and_b32 v4, 7, v0")
    k("v_mul_u32_u24 v4, %d, v4" % US)
    k("v_bfe_u32 v5, v0, 3, 1")
    k("v_lshl_add_u32 v4, v5, 4, v4")
    k("v_lshrrev_b32 v5, 4, v0")
    k("v_sub_u32 v4, v4, v5")
    k("v_add_u32 v4, %d, v4" % (UP - 2 - 12))
    k("v_lshlrev_b32 v4, 4, v4")
    k("v_and_b32 v6, 15, v0")
    k("v_add_u32 v7, v6, v5")
    k("v_lshlrev_b32 v7, 4, v7")
    k("v_add_u32 v7, %d, v7" % K0)
    k("s_waitcnt vmcnt(0) lgkmcnt(0)")
    st.stamp()
    ACC = 8
    UF = 40
    KF = 104
    lg = Cnt(k, "lgkmcnt", 15)
    def issue(r, n):
        bufU = UF + 32 * (r & 1); bufK = KF + 32 * (r & 1)
        if n % 2 == 0:
            dp = n // 2
            k("ds_read_b128 %s, v7 offset:%d" % (vr(bufK + 4 * dp, 4), (4 * (8 * dp + r)) * 16))
            lg.add(("k", r, dp))
        else:
            i = n // 2
            e = 8 * i + 4 - r
            k("ds_read_b128 %s, v4 offset:%d" % (vr(bufU + 4 * i, 4), (4 * e + 12) * 16))
            lg.add(("u", r, i))
    for n in range(16):
        issue(0, n)
    started = set()
    for r in range(8):
        bufU = UF + 32 * (r & 1); bufK = KF + 32 * (r & 1)
        pairs = sorted([(dp, i) for dp in range(8) for i in range(8 - dp)], key=lambda t: (max(t), t))
        nxt = 0
        for c, (dp, i) in enumerate(pairs):
            lg.wait(("k", r, dp)); lg.wait(("u", r, i))
            q = dp + i
            a = vr(ACC + 4 * q, 4)
            k("v_mfma_f32_16x16x32_bf16 %s, %s, %s, %s" % (a, vr(bufU + 4 * i, 4), vr(bufK + 4 * dp, 4), a if q in started else "0"))
            started.add(q)
            if r < 7 and c >= 4 and c % 2 == 0 and nxt < 16:
                issue(r + 1, nxt); nxt += 1
        assert r == 7 or nxt == 16
    st.stamp()
    k("v_lshrrev_b32 v4, 1, v5")
    k("v_lshl_add_u32 v4, v4, 4, v6")
    k("v_and_b32 v7, 1, v5")
    k("v_lshlrev_b32 v7, 3, v7")
    k("v_lshl_add_u32 v5, v4, 4, v7")
    for q in range(8):
        k("ds_read_b64 %s, v5 offset:%d" % (vr(UF + 2 * q, 2), (7 * US + UP - 1 + 32 * q) * 16))
    k("v_mul_u32_u24 v4, 9216, v4")
    k("v_add_u32 v4, v4, v7")
    k("s_lshl_b32 s22, s3, 4")
    k("s_waitcnt lgkmcnt(0)")
    H = 60
    for q in range(8):
        for r in range(4):
            a = ACC + 4 * q + r
            h = UF + 2 * q + (r >> 1)
            t = H + r
            if r & 1:
                k("v_and_b32 v%d, 0xffff0000, v%d" % (t, h))
            else:
                k("v_lshlrev_b32 v%d, 16, v%d" % (t, h))
            k("v_mul_f32 v%d, s27, v%d" % (t, t))
            k("v_cvt_pk_bf16_f32 v%d, 0, v%d" % (t, t))
            k("v_cvt_pk_bf16_f32 v%d, 0, v%d" % (a, a))
            k("v_add_f32 v%d, v%d, v%d" % (a, a, t))
            k("v_cvt_pk_bf16_f32 v%d, 0, v%d" % (a, a))
            k("v_mul_f32 v%d, s26, v%d" % (a, a))
        a = ACC + 4 * q
        k("v_cvt_pk_bf16_f32 v%d, v%d, v%d" % (a, a, a + 1))
        k("v_cvt_pk_bf16_f32 v%d, v%d, v%d" % (a + 1, a + 2, a + 3))
        k("s_add_u32 s23, s22, %d" % (q * 32 * 9216))
        k("buffer_store_dwordx2 %s, v4, s[16:19], s23 offen" % vr(a, 2))
    if stamp:
        k("s_waitcnt vmcnt(0)")
        st.stamp()
        k("s_mov_b32 s33, 0")
        st.flush(4, "s2", "s33", 1)
    k.label(Lend)
    k("s_endpgm")
    return k, (name, 576, 64, LDS_K2)

if __name__ == "__main__":
    k, l = gen_k2(stamp=True)
    open("t_k2.s", "w").write(build_file("; k2 test\n", [l], [k]))
    print(k.max_v, k.max_s)
```

```python
from asm import *
from common import *
from k1 import fbits

def row_sum16(k, v, t):
    k("v_add_f32_dpp v%d, v%d, v%d row_ror:4 row_mask:0xf bank_mask:0xf" % (t, v, v))
    k("v_add_f32_dpp v%d, v%d, v%d row_ror:8 row_mask:0xf bank_mask:0xf" % (v, t, t))
    k("v_mov_b32 v%d, v%d" % (t, v))
    k("v_permlane16_swap_b32 v%d, v%d" % (v, t))
    k("v_add_f32 v%d, v%d, v%d" % (v, v, t))
    k("v_mov_b32 v%d, v%d" % (t, v))
    k("v_permlane32_swap_b32 v%d, v%d" % (v, t))
    k("v_add_f32 v%d, v%d, v%d" % (v, v, t))

def role_ln2(k, Lend, stamp=False):
    st = Stamper(k, stamp)
    st.stamp()
    k("s_load_dwordx2 s[4:5], s[0:1], %d" % KA["ws"])
    k("s_load_dwordx2 s[6:7], s[0:1], %d" % KA["u"])
    k("v_lshrrev_b32 v1, 6, v0")
    k("v_and_b32 v0, 63, v0")
    k("v_readfirstlane_b32 s33, v1")
    k("v_and_b32 v2, 3, v0")
    k("v_lshrrev_b32 v3, 2, v0")
    k("v_lshlrev_b32 v4, 4, v0")
    k("v_mul_u32_u24 v5, 1152, v2")
    k("v_lshl_add_u32 v5, v3, 3, v5")
    k("s_lshl_b32 s34, s3, 1")
    k("s_add_u32 s34, s34, s33")
    k("s_mul_i32 s35, s34, %d" % (4 * 1152))
    k("s_mul_i32 s36, s3, 9216")
    k("v_lshlrev_b32 v6, 4, v3")
    k("s_waitcnt lgkmcnt(0)")
    srd(k, 8, 4, OFF_TT, SZ_ACT)
    srd(k, 12, 6, 0, SZ_ACT)
    srd(k, 16, 4, OFF_X2, SZ_ACT)
    srd(k, 20, 4, OFF_H2P, SZ_ACT)
    srd(k, 24, 4, OFF_MOD, 3456 * 4)
    k("s_lshl_b32 s37, s33, 10")
    for i in range(5):
        if i == 4:
            Ls = k.newlabel("skip")
            k("s_cmp_eq_u32 s33, 1")
            k("s_cbranch_scc1 " + Ls)
        k("s_add_u32 s38, s37, %d" % (2048 * i))
        k("s_mov_b32 m0, s38")
        k("s_add_u32 s38, s38, s36")
        k("buffer_load_dwordx4 v4, s[8:11], s38 offen lds")
        if i == 4:
            k.label(Ls)
    X = 8
    for i in range(9):
        k("buffer_load_dwordx2 %s, v5, s[12:15], s35 offen offset:%d" % (vr(X + 2 * i, 2), 128 * i))
    CB, SB = 28, 64
    for i in range(9):
        k("buffer_load_dwordx4 %s, v6, s[24:27], 0 offen offset:%d" % (vr(SB + 4 * i, 4), 256 * i) if False else
          "buffer_load_dwordx4 %s, v6, s[24:27], s39 offen offset:%d" % (vr(SB + 4 * i, 4), 256 * i) if i else
          "s_mov_b32 s39, %d\nbuffer_load_dwordx4 %s, v6, s[24:27], s39 offen offset:0" % (3 * 576 * 4, vr(SB, 4)))
    k("s_mov_b32 s40, %d" % (4 * 576 * 4))
    for i in range(9):
        k("buffer_load_dwordx4 %s, v6, s[24:27], s40 offen offset:%d" % (vr(CB + 4 * i, 4), 256 * i))
    k("v_lshrrev_b32 v7, 4, v0")
    k("v_lshlrev_b32 v7, 8, v7")
    k("v_lshl_add_u32 v7, v2, 6, v7")
    k("v_bfe_u32 v1, v0, 2, 2")
    k("v_lshl_add_u32 v7, v1, 4, v7")
    k("s_lshl_b32 s38, s33, 3")
    k("v_add_u32 v7, s38, v7")
    k("s_waitcnt vmcnt(27)")
    k("s_barrier")
    T = 100
    for i in range(9):
        k("ds_read_b64_tr_b16 %s, v7 offset:%d" % (vr(T + 2 * i, 2), 1024 * i))
    Fv = 120
    k("v_mov_b32 v118, 0")
    k("v_mov_b32 v119, 0")
    k("s_waitcnt vmcnt(18)")
    st.stamp()
    for i in range(9):
        k("s_waitcnt lgkmcnt(%d)" % (8 - i))
        for h in range(2):
            x = X + 2 * i + h; t = T + 2 * i + h; f = Fv + 4 * i + 2 * h
            k("v_lshlrev_b32 v%d, 16, v%d" % (f, x))
            k("v_and_b32 v%d, 0xffff0000, v%d" % (f + 1, x))
            k("v_lshlrev_b32 v156, 16, v%d" % t)
            k("v_and_b32 v157, 0xffff0000, v%d" % t)
            k("v_pk_add_f32 v[%d:%d], v[%d:%d], v[156:157]" % (f, f + 1, f, f + 1))
            k("v_cvt_pk_bf16_f32 v%d, v%d, v%d" % (x, f, f + 1))
            k("v_lshlrev_b32 v%d, 16, v%d" % (f, x))
            k("v_and_b32 v%d, 0xffff0000, v%d" % (f + 1, x))
            k("v_pk_add_f32 v[118:119], v[118:119], v[%d:%d]" % (f, f + 1))
        k("buffer_store_dwordx2 %s, v5, s[16:19], s35 offen offset:%d" % (vr(X + 2 * i, 2), 128 * i))
    k("v_add_f32 v118, v118, v119")
    row_sum16(k, 118, 119)
    k("v_mul_f32 v118, 0x%08x, v118" % fbits(1.0 / 576))
    k("v_mov_b32 v119, v118")
    k("v_mov_b32 v158, 0")
    k("v_mov_b32 v159, 0")
    for e in range(0, 36, 2):
        k("v_pk_add_f32 v[156:157], v[%d:%d], v[118:119] neg_lo:[0,1] neg_hi:[0,1]" % (Fv + e, Fv + e + 1))
        k("v_pk_fma_f32 v[158:159], v[156:157], v[156:157], v[158:159]")
    k("v_add_f32 v158, v158, v159")
    row_sum16(k, 158, 159)
    k("v_mul_f32 v158, 0x%08x, v158" % fbits(1.0 / 576))
    k("v_cvt_pk_bf16_f32 v158, 0, v158")
    k("v_add_f32 v158, 0x%08x, v158" % fbits(1e-5))
    k("v_cvt_pk_bf16_f32 v158, 0, v158")
    k("v_sqrt_f32 v158, v158")
    k("v_cvt_pk_bf16_f32 v158, 0, v158")
    k("v_rcp_f32 v158, v158")
    k("v_cvt_pk_bf16_f32 v118, 0, v118")
    k("v_mov_b32 v119, v118")
    k("v_mov_b32 v159, v158")
    k("v_lshrrev_b32 v1, 2, v3")
    k("v_lshlrev_b32 v1, 10, v1")
    k("v_bfe_u32 v6, v3, 1, 1")
    k("v_lshl_add_u32 v1, v6, 9, v1")
    k("v_and_b32 v6, 1, v3")
    k("v_lshl_add_u32 v1, v6, 3, v1")
    k("v_lshl_add_u32 v1, v2, 4, v1")
    k("s_lshr_b32 s36, s34, 3")
    k("s_mul_i32 s36, s36, 36864")
    k("s_and_b32 s37, s34, 7")
    k("s_lshl_b32 s37, s37, 6")
    k("s_add_u32 s36, s36, s37")
    k("s_waitcnt vmcnt(9)")
    for i in range(9):
        for h in range(2):
            f = Fv + 4 * i + 2 * h; cb = CB + 4 * i + 2 * h; sb = SB + 4 * i + 2 * h
            k("v_pk_add_f32 v[%d:%d], v[%d:%d], 1.0 op_sel_hi:[1,0]" % (cb, cb + 1, cb, cb + 1))
            k("v_pk_add_f32 v[%d:%d], v[%d:%d], v[118:119] neg_lo:[0,1] neg_hi:[0,1]" % (f, f + 1, f, f + 1))
            k("v_cvt_pk_bf16_f32 v%d, 0, v%d" % (cb, cb))
            k("v_cvt_pk_bf16_f32 v%d, 0, v%d" % (cb + 1, cb + 1))
            k("v_cvt_pk_bf16_f32 v%d, 0, v%d" % (f, f))
            k("v_cvt_pk_bf16_f32 v%d, 0, v%d" % (f + 1, f + 1))
            k("v_pk_mul_f32 v[%d:%d], v[%d:%d], v[158:159]" % (f, f + 1, f, f + 1))
            k("v_cvt_pk_bf16_f32 v%d, 0, v%d" % (f, f))
            k("v_cvt_pk_bf16_f32 v%d, 0, v%d" % (f + 1, f + 1))
            k("v_pk_mul_f32 v[%d:%d], v[%d:%d], v[%d:%d]" % (f, f + 1, f, f + 1, cb, cb + 1))
            k("v_cvt_pk_bf16_f32 v%d, 0, v%d" % (f, f))
            k("v_cvt_pk_bf16_f32 v%d, 0, v%d" % (f + 1, f + 1))
            k("v_pk_add_f32 v[%d:%d], v[%d:%d], v[%d:%d]" % (f, f + 1, f, f + 1, sb, sb + 1))
            k("v_cvt_pk_bf16_f32 v%d, v%d, v%d" % (T + 2 * i + h, f, f + 1))
        k("s_add_u32 s37, s36, %d" % (4096 * i))
        k("buffer_store_dwordx2 %s, v1, s[20:23], s37 offen" % vr(T + 2 * i, 2))
    if stamp:
        k("s_waitcnt vmcnt(0)")
        st.stamp()
        st.flush(4, "s3", "s33", 2)
    k("s_endpgm")

def gen_k3(name="ln2_kernel", stamp=False):
    from k1 import dispatch
    k = Kernel(name)
    tot = dispatch(k, [(256, lambda k, L: role_ln2(k, L, stamp))])
    return k, (name, tot, 128, 9216)

if __name__ == "__main__":
    k, l = gen_k3(stamp=True)
    open("t_k3.s", "w").write(build_file("; k3 test\n", [l], [k]))
    print(k.max_v, k.max_s)
```

```python
from asm import *
from common import *

class Cnt:
    def __init__(self, k, name, mx):
        self.k, self.name, self.mx = k, name, mx
        self.ops = []
        self.done = 0
    def add(self, tag):
        self.ops.append(tag)
        assert len(self.ops) - self.done <= self.mx + 0 or True
    def wait(self, tag):
        idx = max(i for i, t in enumerate(self.ops) if t == tag)
        if idx < self.done:
            return
        n = len(self.ops) - 1 - idx
        assert n <= self.mx, (self.name, n)
        self.k("s_waitcnt %s(%d)" % (self.name, n))
        self.done = idx + 1
    def outstanding(self):
        return len(self.ops) - self.done

def gen_k4(name="gemm1_kernel", LA=4, store_mod="", stamp=False):
    k = Kernel(name)
    R_H2, R_W, R_HH = 8, 12, 16
    S_FT, S_MT, S_W = 20, 21, 22
    S_WOFF, S_HOFF, S_M0 = 23, 24, 25
    Lend = k.newlabel("end")
    k("s_cmp_ge_u32 s2, 256")
    k("s_cbranch_scc1 " + Lend)
    k("s_load_dwordx2 s[4:5], s[0:1], %d" % KA["ws"])
    st = Stamper(k, stamp)
    st.stamp()
    k("s_and_b32 s26, s2, 7")
    k("s_lshr_b32 s27, s2, 3")
    k("s_and_b32 s20, s27, 3")
    k("s_lshl_b32 s26, s26, 2")
    k("s_add_u32 s20, s20, s26")
    k("s_lshr_b32 s21, s27, 2")
    k("v_lshrrev_b32 v1, 6, v0")
    k("v_and_b32 v0, 63, v0")
    k("v_readfirstlane_b32 s22, v1")
    k("v_lshlrev_b32 v1, 4, v0")
    k("s_waitcnt lgkmcnt(0)")
    srd(k, R_H2, 4, OFF_H2P, SZ_ACT)
    srd(k, R_W, 4, OFF_WGU, SZ_WGU)
    srd(k, R_HH, 4, OFF_HH, SZ_HH)
    k("s_lshl_b32 s26, s21, 3")
    k("s_add_u32 s26, s26, s22")
    k("s_mul_i32 s27, s26, %d" % (36 * 1024))
    k("s_mul_i32 s24, s26, %d" % (288 * 1024))
    k("s_mul_i32 s28, s20, %d" % (9 * 1024))
    k("s_add_u32 s24, s24, s28")
    k("s_mul_i32 s23, s20, %d" % (324 * 1024))
    k("s_mul_i32 s28, s22, %d" % (9 * 1024))
    k("s_add_u32 s23, s23, s28")
    k("s_mov_b32 s25, s28")
    AB = 8
    ACC = AB + 144
    WF = ACC + 32
    NW = LA + 1
    TMP = WF + 4 * NW
    Lnd = k.newlabel("nodma")
    k("s_cmp_ge_u32 s22, 4")
    k("s_cbranch_scc1 " + Lnd)
    for dma in (True, False):
        if not dma:
            k.label(Lnd)
        st.n = 1
        vm = Cnt(k, "vmcnt", 63)
        lg = Cnt(k, "lgkmcnt", 15)
        def issue_dma(st):
            for g in range(3):
                n = 4 if g < 2 else 1
                k("s_add_u32 s26, s25, %d" % ((st % 4) * 36864 + g * 4096))
                k("s_mov_b32 m0, s26")
                k("s_add_u32 s26, s23, %d" % (st * 36864 + g * 4096))
                for i in range(n):
                    k("buffer_load_dwordx4 v1, s[%d:%d], s26 offen offset:%d lds" % (R_W, R_W + 3, i * 1024))
                    vm.add(("st", st))
        def a_loads(lo, hi):
            for ks in range(lo, hi):
                if ks % 4 == 0 or ks == lo:
                    k("s_add_u32 s28, s27, %d" % ((ks // 4) * 4096))
                k("buffer_load_dwordx4 %s, v1, s[%d:%d], s28 offen offset:%d" % (vr(AB + 4 * ks, 4), R_H2, R_H2 + 3, (ks % 4) * 1024))
                vm.add(("a", ks))
        if dma:
            issue_dma(0)
        a_loads(0, 36)
        if dma:
            issue_dma(1)
            issue_dma(2)
            vm.wait(("st", 0))
        k("s_barrier")
        st.stamp()
        def rd(n):
            blk, ks = divmod(n, 36)
            k("ds_read_b128 %s, v1 offset:%d" % (vr(WF + 4 * (n % NW), 4), (blk % 4) * 36864 + ks * 1024) if (blk % 4) * 36864 + ks * 1024 < 65536 else
              "ds_read_b128 %s, v%d offset:%d" % (vr(WF + 4 * (n % NW), 4), 2 + ((blk % 4) * 36864 + ks * 1024) // 65536 - 1, ((blk % 4) * 36864 + ks * 1024) % 65536))
            lg.add(n)
        k("v_add_u32 v2, 0x10000, v1")
        k("v_add_u32 v3, 0x20000, v1")
        def epi_ops(j):
            a = ACC + 16 * (j % 2)
            o = []
            for r in range(8):
                o.append("v_cvt_pk_bf16_f32 v%d, 0, v%d" % (a + r, a + r))
                o.append("v_cvt_pk_bf16_f32 v%d, 0, v%d" % (a + 8 + r, a + 8 + r))
                o.append("v_mul_f32 v%d, v%d, v%d" % (a + r, a + r, a + 8 + r))
                if r & 1:
                    o.append("v_cvt_pk_bf16_f32 v%d, v%d, v%d" % (TMP + r // 2, a + r - 1, a + r))
            o.append("s_add_u32 s29, s24, %d" % (j * 1024))
            o.append("STORE buffer_store_dwordx4 %s, v1, s[%d:%d], s29 offen%s" % (vr(TMP, 4), R_HH, R_HH + 3, store_mod))
            return o
        for n in range(LA):
            rd(n)
        for j in range(9):
            pend = epi_ops(j - 1) if j > 0 else []
            for ks in range(36):
                n = j * 36 + ks
                if n + LA < 324:
                    if j == 0 and ks == 36 - LA:
                        if dma:
                            vm.wait(("st", 1))
                        k("s_barrier")
                    rd(n + LA)
                if j == 0:
                    vm.wait(("a", ks))
                lg.wait(n)
                a = vr(ACC + 16 * (j % 2), 16)
                k("v_mfma_f32_32x32x16_bf16 %s, %s, %s, %s" % (a, vr(WF + 4 * (n % NW), 4), vr(AB + 4 * ks, 4), "0" if ks == 0 else a))
                if dma and ks == (8 if j == 0 else 1) and j + 3 < 9:
                    issue_dma(j + 3)
                if ks >= 3 and pend:
                    for _ in range(2):
                        if pend:
                            t = pend.pop(0)
                            if t.startswith("STORE "):
                                k(t[6:]); vm.add(("o", j - 1))
                            else:
                                k(t)
            assert not pend
            if j + 2 < 9:
                if dma:
                    vm.wait(("st", j + 2))
                k("s_barrier")
            st.stamp()
        for t in epi_ops(8):
            k(t[6:] if t.startswith("STORE ") else t)
        k("s_waitcnt vmcnt(0)")
        st.stamp()
        st.flush(4, "s2", "s22", 8)
        k("s_endpgm")
    k.label(Lend)
    k("s_endpgm")
    return k, (name, 256, 512, 4 * 36864)

if __name__ == "__main__":
    for nm, kw in [("a", dict(LA=4)), ("b", dict(LA=6)), ("c", dict(LA=4, store_mod=" nt")), ("s", dict(LA=4, stamp=True))]:
        k, l = gen_k4("gemm1%s_kernel" % nm, **kw)
        open("t_k4_%s.s" % nm, "w").write(build_file("; k4 test\n", [l], [k]))
        print(k.max_v, k.max_s)
```

```python
from asm import *
from common import *

def gen_k5(name="gemm2_kernel", P=6, same_tile=0, no_mfma=False):
    k = Kernel(name)
    NST = 36
    S_WS, S_OUT = 4, 6
    R_HH, R_WD, R_X2, R_OUT, R_MOD = 8, 12, 16, 20, 24
    S_TB = 28
    S_WC = 33
    S_MT, S_DT, S_W, S_T0, S_T1, S_CNT = 37, 38, 39, 40, 41, 42
    k("s_cmp_ge_u32 s2, 240")
    Lend = k.newlabel("end")
    k("s_cbranch_scc1 " + Lend)
    k("s_load_dwordx2 s[4:5], s[0:1], %d" % KA["ws"])
    k("s_load_dwordx2 s[6:7], s[0:1], %d" % KA["out"])
    k("s_and_b32 s40, s2, 7")
    k("s_mul_i32 s40, s40, 30")
    k("s_lshr_b32 s41, s2, 3")
    k("s_add_u32 s40, s40, s41")
    k("s_cmp_ge_u32 s40, 234")
    k("s_cbranch_scc1 " + Lend)
    k("s_mul_i32 s37, s40, 7282")
    k("s_lshr_b32 s37, s37, 16")
    k("s_mul_i32 s41, s37, 9")
    k("s_sub_u32 s38, s40, s41")
    if same_tile == 1:
        k("s_mov_b32 s37, 0")
        k("s_mov_b32 s38, 0")
    if same_tile == 2:
        k("s_and_b32 s37, s2, 7")
        k("s_mov_b32 s38, 0")
    k("v_lshrrev_b32 v1, 6, v0")
    k("v_and_b32 v0, 63, v0")
    k("v_readfirstlane_b32 s39, v1")
    k("s_waitcnt lgkmcnt(0)")
    srd(k, R_HH, S_WS, OFF_HH, SZ_HH)
    srd(k, R_WD, S_WS, OFF_WDP, SZ_WDP)
    srd(k, R_X2, S_WS, OFF_X2, SZ_ACT)
    srd(k, R_OUT, S_OUT, 0, SZ_ACT)
    srd(k, R_MOD, S_WS, OFF_MOD, 3456 * 4)
    k("s_mul_i32 s40, s37, 5")
    for b in range(5):
        k("s_add_u32 s41, s40, %d" % b)
        k("s_lshr_b32 s%d, s41, 1" % (S_TB + b))
        k("s_mul_i32 s%d, s%d, %d" % (S_TB + b, S_TB + b, 288 * 1024))
        k("s_and_b32 s41, s41, 1")
        k("s_lshl_b32 s41, s41, 8")
        k("s_add_u32 s%d, s%d, s41" % (S_TB + b, S_TB + b))
    k("s_mul_i32 s40, s38, %d" % (144 * 4096))
    for c in range(4):
        k("s_add_u32 s41, s39, %d" % c)
        k("s_and_b32 s41, s41, 3")
        k("s_lshl_b32 s41, s41, 10")
        k("s_add_u32 s%d, s40, s41" % (S_WC + c))
    VH, VW, VT, VKQ = 2, 3, 4, 5
    k("v_and_b32 v4, 15, v0")
    k("v_lshrrev_b32 v5, 4, v0")
    k("v_lshrrev_b32 v6, 1, v5")
    k("v_lshlrev_b32 v6, 10, v6")
    k("v_and_b32 v7, 1, v5")
    k("v_lshlrev_b32 v7, 9, v7")
    k("v_lshlrev_b32 v2, 4, v4")
    k("v_add3_u32 v2, v2, v6, v7")
    k("s_mul_i32 s40, s39, %d" % (36 * 2048))
    k("v_add_u32 v2, s40, v2")
    k("v_lshlrev_b32 v3, 4, v0")
    k("s_mul_i32 s40, s39, %d" % (36 * 4096))
    k("v_add_u32 v3, s40, v3")
    BUF = 16
    def hb(p, b): return BUF + p * 36 + b * 4
    def wb(p, c): return BUF + p * 36 + 20 + c * 4
    def loads(p):
        for c in range(4):
            k("buffer_load_dwordx4 %s, v3, s[%d:%d], s%d offen" % (vr(wb(p, c), 4), R_WD, R_WD + 3, S_WC + c))
        for b in range(5):
            k("buffer_load_dwordx4 %s, v2, s[%d:%d], s%d offen" % (vr(hb(p, b), 4), R_HH, R_HH + 3, S_TB + b))
        k("v_add_u32 v2, 2048, v2")
        k("v_add_u32 v3, 4096, v3")
    def mfmas(p, first):
        if no_mfma and not first: return
        for c in range(4):
            for b in range(5):
                a = ar((c * 5 + b) * 4, 4)
                k("v_mfma_f32_16x16x32_bf16 %s, %s, %s, %s" % (a, vr(wb(p, c), 4), vr(hb(p, b), 4), "0" if first else a))
    for p in range(P - 1):
        loads(p)
    nloop = (NST - (P - 1) - 1) // P
    loads(P - 1)
    k("s_waitcnt vmcnt(%d)" % (9 * (P - 1)))
    mfmas(0, True)
    s = 1
    if nloop > 0:
        k("s_mov_b32 s42, 0")
        Ll = k.newlabel("loop")
        k.label(Ll)
        for i in range(P):
            st = s + i
            loads((st - 1) % P)
            k("s_waitcnt vmcnt(%d)" % (9 * (P - 1)))
            mfmas(st % P, False)
        k("s_add_u32 s42, s42, 1")
        k("s_cmp_lt_u32 s42, %d" % nloop)
        k("s_cbranch_scc1 " + Ll)
        s += nloop * P
    VX = 8
    first_tail = True
    while s < NST:
        if s + P - 1 < NST:
            loads((s - 1) % P)
            k("s_waitcnt vmcnt(%d)" % (9 * (P - 1)))
        else:
            k("s_waitcnt vmcnt(%d)" % (9 * (NST - 1 - s)))
        mfmas(s % P, False)
        s += 1
    k("s_mul_i32 s40, s37, %d" % (80 * 1152))
    k("s_lshl_b32 s41, s38, 7")
    k("s_add_u32 s40, s40, s41")
    k("s_lshl_b32 s41, s39, 5")
    k("s_add_u32 s40, s40, s41")
    k("v_mul_u32_u24 v8, 1152, v4")
    k("v_lshl_add_u32 v8, v5, 3, v8")
    k("v_add_u32 v8, s40, v8")
    X2R = 16
    for b in range(5):
        k("s_mov_b32 s%d, %d" % (S_TB + b, b * 16 * 1152))
        k("buffer_load_dwordx2 %s, v8, s[%d:%d], s%d offen" % (vr(X2R + 2 * b, 2), R_X2, R_X2 + 3, S_TB + b))
    k("s_lshl_b32 s40, s38, 8")
    k("s_lshl_b32 s41, s39, 6")
    k("s_add_u32 s40, s40, s41")
    k("s_add_u32 s40, s40, %d" % (5 * 576 * 4))
    k("v_lshlrev_b32 v9, 4, v5")
    k("buffer_load_dwordx4 v[28:31], v9, s[%d:%d], s40 offen" % (R_MOD, R_MOD + 3))
    k("v_lshlrev_b32 v10, 4, v0")
    for c in range(1, 4):
        k("s_add_u32 s41, s39, %d" % c)
        k("s_and_b32 s41, s41, 3")
        k("s_mul_i32 s41, s41, %d" % (15 * 1024))
        k("v_add_u32 v%d, s41, v10" % (10 + c))
    for c in range(1, 4):
        for b in range(5):
            k("ds_write_b128 v%d, %s offset:%d" % (10 + c, ar((c * 5 + b) * 4, 4), ((c - 1) * 5 + b) * 1024))
    k("s_mul_i32 s41, s39, %d" % (15 * 1024))
    k("v_add_u32 v10, s41, v10")
    k("s_waitcnt lgkmcnt(0)")
    k("s_barrier")
    PR = 32
    for i in range(15):
        k("ds_read_b128 %s, v10 offset:%d" % (vr(PR + 4 * i, 4), i * 1024))
    AC = 96
    for i in range(20):
        k("v_accvgpr_read_b32 v%d, a%d" % (AC + i, i))
    k("s_waitcnt lgkmcnt(0)")
    for b in range(5):
        for c in range(3):
            for r in range(4):
                k("v_add_f32 v%d, v%d, v%d" % (AC + 4 * b + r, AC + 4 * b + r, PR + 4 * (c * 5 + b) + r))
    k("s_waitcnt vmcnt(0)")
    for b in range(5):
        t = 120
        for r in range(4):
            a = AC + 4 * b + r
            k("v_cvt_pk_bf16_f32 v%d, 0, v%d" % (a, a))
            k("v_mul_f32 v%d, v%d, v%d" % (a, a, 28 + r))
            k("v_cvt_pk_bf16_f32 v%d, 0, v%d" % (a, a))
            x = X2R + 2 * b + (r >> 1)
            if r & 1:
                k("v_and_b32 v%d, 0xffff0000, v%d" % (t + r, x))
            else:
                k("v_lshlrev_b32 v%d, 16, v%d" % (t + r, x))
            k("v_add_f32 v%d, v%d, v%d" % (a, a, t + r))
        k("v_cvt_pk_bf16_f32 v%d, v%d, v%d" % (124 + 2 * b, AC + 4 * b, AC + 4 * b + 1))
        k("v_cvt_pk_bf16_f32 v%d, v%d, v%d" % (125 + 2 * b, AC + 4 * b + 2, AC + 4 * b + 3))
        k("buffer_store_dwordx2 %s, v8, s[%d:%d], s%d offen" % (vr(124 + 2 * b, 2), R_OUT, R_OUT + 3, S_TB + b))
    k.label(Lend)
    k("s_endpgm")
    return k, (name, 240, 256, 60 * 1024)

if __name__ == "__main__":
    import sys
    ks = []; Ls = []
    for nm, kw in [("a", dict(P=4)), ("b", dict(P=4, same_tile=1)), ("c", dict(P=4, no_mfma=True)), ("d", dict(P=4, same_tile=1, no_mfma=True)), ("e", dict(P=6, same_tile=2, no_mfma=True))]:
        k, l = gen_k5("gemm2%s_kernel" % nm, **kw)
        open("t_k5_%s.s" % nm, "w").write(build_file("; k5 test\n", [l], [k]))
```

```python
import sys
from asm import *
from common import *
import k1, k2, k3, k4, k5
HEADER = open("adaLN_cond__ssm_conv_s4__glu_gated_bilinear__prompt.s.ref").read().split("; Override launch")[0]
def build(path):
    parts = [k1.gen_k1(), k2.gen_k2(), k3.gen_k3(), k4.gen_k4(), k5.gen_k5(P=4)]
    open(path, "w").write(build_file(HEADER, [p[1] for p in parts], [p[0] for p in parts]))
if __name__ == "__main__":
    build(sys.argv[1] if len(sys.argv) > 1 else "adaLN_cond__ssm_conv_s4__glu_gated_bilinear__prompt.s")
```

```python
import sys
from asm import *
from common import *
import k1, k2, k3, k4, k5
from main import HEADER
parts = [k1.gen_k1(), k2.gen_k2(), k3.gen_k3(), k4.gen_k4(), k5.gen_k5(P=4)]
e = Kernel("empty_kernel"); e("s_endpgm")
open("v_base.s", "w").write(build_file(HEADER, [p[1] for p in parts], [p[0] for p in parts]))
open("v_e5.s", "w").write(build_file(HEADER, [p[1] for p in parts] + [("empty_kernel", 256, 64, 0)] * 5, [p[0] for p in parts] + [e]))
open("v_e5pre.s", "w").write(build_file(HEADER, [("empty_kernel", 256, 64, 0)] * 5 + [p[1] for p in parts], [p[0] for p in parts] + [e]))
```
